```python
import torch

def _softmax(x, axis=-1):
    return torch.softmax(x, dim=axis)
def _gelu(x):
    return torch.nn.functional.gelu(x, approximate="tanh")
def _silu(x):
    return torch.nn.functional.silu(x)
def _sigmoid(x):
    return torch.sigmoid(x)
def _layernorm(x, axis=-1, eps=1e-5):
    m = x.mean(dim=axis, keepdim=True)
    v = x.var(dim=axis, keepdim=True, unbiased=False)
    return (x - m) / torch.sqrt(v + eps)
def _scatter_add(tgt, idx, src, axis=0):
    return tgt.clone().index_add_(axis, idx, src)
def _segment_sum(src, seg, n):
    out = torch.zeros((n,) + src.shape[1:], dtype=src.dtype)
    return out.index_add_(0, seg, src)
def _pad(x, pw):
    flat = tuple(v for pair in reversed(pw) for v in pair)
    return torch.nn.functional.pad(x, flat)

kernel_name = 'standalone__ssm_conv_s4d__prompt'

def setup_inputs():

    _w = (lambda a: (lambda t: t.to(torch.bfloat16) if t.is_floating_point() else t)(torch.as_tensor(a)))
    Bsz, L, D, N = 1, 2048, 448, 256
    return {
        "u": _w((lambda *s: torch.randn(*s, dtype=torch.bfloat16) * 0.05)(Bsz, L, D)),
        "log_A_real": _w((lambda *s: torch.randn(*s, dtype=torch.bfloat16) * 6.4)(D, N) * 0.5),
        "A_imag": _w((lambda *s: torch.randn(*s, dtype=torch.bfloat16) * 0.05)(D, N) * 3.14),
        "C_real": _w((lambda *s: torch.randn(*s, dtype=torch.bfloat16) * 0.05)(D, N) / N ** 0.5),
        "C_imag": _w((lambda *s: torch.randn(*s, dtype=torch.bfloat16) * 0.05)(D, N) / N ** 0.5),
        "log_dt": _w((lambda *s: torch.randn(*s, dtype=torch.bfloat16) * 0.05)(D) * 0.5 - 4.0),
        "D_skip": _w((lambda *s: torch.randn(*s, dtype=torch.bfloat16) * 0.05)(D)),
    }

def reference(u, log_A_real, A_imag, C_real, C_imag, log_dt, D_skip):
    L = u.shape[1]
    dt = torch.exp(log_dt)
    A = -torch.exp(log_A_real) + 1j * A_imag
    C = (C_real + 1j * C_imag) * dt[:, None]
    pos = (lambda x, dt: x.to(dt))(torch.arange(L), log_dt.dtype)
    P = torch.exp((A * dt[:, None])[:, :, None] * pos[None, None, :])
    K = 2.0 * torch.einsum("dn,dnl->dl", C, P).real
    L2 = 2 * L
    u_t = (lambda x, *d: x.permute(*d))(u, 0, 2, 1)
    Kf = (lambda x, *a, **k: torch.fft.rfft(x.float(), *a, **k))(K, L2)
    Uf = (lambda x, *a, **k: torch.fft.rfft(x.float(), *a, **k))(u_t, L2)
    y = (lambda x, *a, **k: torch.fft.irfft(x, *a, **k).to(torch.bfloat16))(Uf * Kf[None, :, :], L2)[:, :, :L]
    y = (lambda x, *d: x.permute(*d))(y, 0, 2, 1)
    return y + u * D_skip[None, None, :]
```

```python
import sys, struct, math

def f2u(x): return struct.unpack("<I", struct.pack("<f", x))[0]
def u2f(u): return struct.unpack("<f", struct.pack("<I", u))[0]

class Cfg:
    TA = [2, 6, 7]
    TB = [0, 1, 3, 4, 5]
    groupsB = [[0, 1], [3], [4], [5]]
    prof = False
    look = 10

ROW = 2064
U0 = 64000
UCP = 4160
UCH = 4 * UCP
KR0 = U0 + 4 * UCH
KRCH = 4608
CONST0 = KR0 + 4 * KRCH + 240
LDS_BYTES = CONST0 + 272
M0U = 61000

class Asm:
    def __init__(self): self.l = []; self.nstamp = 0
    def __call__(self, s): self.l.append("    " + s)
    def label(self, s): self.l.append(s + ":")
    def c(self, s): self.l.append("    ; " + s)
    def text(self): return "\n".join(self.l) + "\n"

def vr(a, n=1): return f"v{a}" if n == 1 else f"v[{a}:{a+n-1}]"

def gen(cfg):
    A = Asm()
    def stamp(k):
        if cfg.prof: A(f"s_memtime s[{64+2*k}:{65+2*k}]")
    vLane, vG0, vG1 = 1, 2, 3
    vS = [4, 8]
    vP = [12, 14]
    vUA, vKA, vEA = 16, 17, 18
    vTmp = 19
    vSk = [20, 28]
    vPar = 36
    vYA, vXA = 40, 41
    vK1, vK2, vDt = 42, 43, 44
    T = 46
    vYF, vXF, vAcc = 160, 192, 224
    sW, sC, sHF, sRole = 32, 33, 34, 15
    sSelLo, sSelHi = 44, 45
    sM0W = 46
    sD = 40

    A("s_cmp_ge_u32 s2, 224")
    A("s_cbranch_scc1 L_end")
    A("s_load_dwordx16 s[16:31], s[0:1], 0")
    if cfg.prof: A("s_load_dwordx2 s[62:63], s[0:1], 72")
    stamp(0)
    A(f"v_lshrrev_b32 v{vTmp}, 6, v0")
    A(f"v_and_b32 v{vLane}, 63, v0")
    A("s_and_b32 s12, s2, 7")
    A(f"v_readfirstlane_b32 s{sW}, v{vTmp}")
    A("s_lshr_b32 s13, s2, 3")
    A("s_mul_i32 s12, s12, 112")
    A("s_lshr_b32 s14, s13, 1")
    A(f"s_and_b32 s{sRole}, s13, 1")
    A("s_lshl_b32 s14, s14, 3")
    A("s_add_u32 s14, s14, s12")
    A(f"s_and_b32 s{sC}, s{sW}, 3")
    A(f"s_lshr_b32 s{sHF}, s{sW}, 2")
    A(f"s_lshl_b32 s{sM0W}, s{sW}, 8")
    A("s_mov_b32 s6, 1835008"); A("s_mov_b32 s7, 0x20000")
    A("s_mov_b32 s10, 1835008"); A("s_mov_b32 s11, 0x20000")
    A(f"s_mov_b32 s{sSelLo}, 0x05040100"); A(f"s_mov_b32 s{sSelHi}, 0x07060302")
    A("s_lshl_b32 s3, s14, 8")
    A(f"s_lshl_b32 s35, s{sC}, 9"); A("s_add_u32 s3, s3, s35")
    A(f"s_lshl_b32 s35, s{sHF}, 8"); A("s_add_u32 s3, s3, s35")
    A(f"v_lshl_add_u32 v46, v{vLane}, 2, s3")
    A(f"s_lshl_b32 s47, s{sHF}, 10"); A(f"s_lshl_b32 s35, s{sC}, 7"); A("s_add_u32 s47, s47, s35")
    A(f"v_lshl_add_u32 v47, v{vLane}, 1, s47")
    A("v_mul_u32_u24 v47, 896, v47")
    A(f"v_add_u32 v{vG0}, s14, v47")
    A(f"v_add_u32 v{vG1}, {512*896}, v{vG0}")
    A(f"s_lshl_b32 s3, s13, 3"); A(f"s_add_u32 s3, s3, s{sW}"); A("s_mul_i32 s3, s3, 10")
    A(f"v_add_u32 v48, -1, v{vLane}")
    A("v_and_b32 v49, 1, v48")
    A("v_lshrrev_b32 v48, 1, v48")
    A("v_add_u32 v48, s3, v48")
    A("v_mul_u32_u24 v48, 896, v48")
    A("v_mul_u32_u24 v49, 104, v49")
    A("v_add3_u32 v48, v48, v49, s12")
    A(f"v_subrev_u32 v49, 896, v{vG0}")
    A(f"v_cmp_eq_u32 vcc, 0, v{vLane}")
    A(f"v_subrev_u32 v50, {127*896}, v{vG1}")
    A("s_nop 0")
    A("v_cndmask_b32 v48, v48, v49, vcc")
    A(f"v_cmp_eq_u32 vcc, 63, v{vLane}")
    A("v_mov_b32 v51, 0")
    A("s_nop 0")
    A("v_cndmask_b32 v48, v48, v50, vcc")
    A("v_lshrrev_b32 v52, 7, v0"); A("v_and_b32 v53, 127, v0")
    A(f"v_mul_u32_u24 v52, {KRCH}, v52")
    A("v_lshl_add_u32 v52, v53, 2, v52")
    A(f"v_add_u32 v52, {KR0+4096}, v52")
    A("ds_write_b32 v52, v51")
    A("v_lshrrev_b32 v52, 3, v53"); A("v_and_b32 v53, 7, v53")
    A(f"v_mul_u32_u24 v52, {UCP}, v52")
    A("v_lshl_add_u32 v52, v53, 2, v52")
    A(f"ds_write_b32 v52, v51 offset:{U0}")
    A(f"v_lshlrev_b32 v52, 2, v{vLane}")
    A(f"v_add_u32 v52, {CONST0}, v52")
    A("v_mov_b32 v53, 0x3f80")
    A("ds_write_b32 v52, v53")
    A("s_waitcnt lgkmcnt(0)")
    stamp(1)
    A("s_load_dwordx2 s[36:37], s[26:27], s14")
    A("s_load_dwordx2 s[38:39], s[28:29], s14")
    for i in range(4):
        A(f"global_load_dword v{vPar+i}, v46, s[{18+2*i}:{19+2*i}]")
    A("s_mov_b32 s4, s16"); A("s_mov_b32 s5, s17")
    A("s_mov_b32 s8, s30"); A("s_mov_b32 s9, s31")
    A("s_mov_b32 exec_lo, 0x1fffff"); A("s_mov_b32 exec_hi, 0x80000000")
    A(f"buffer_load_dwordx2 {vr(vP[0],2)}, v48, s[4:7], 0 offen")
    A("s_mov_b64 exec, -1")
    A("s_barrier")
    A(f"buffer_load_dwordx2 {vr(vS[0],2)}, v{vG0}, s[4:7], 0 offen")
    A(f"buffer_load_dwordx2 {vr(vS[0]+2,2)}, v{vG0}, s[4:7], 0 offen offset:896")
    A(f"s_cmp_lg_u32 s{sHF}, 0")
    A("s_cbranch_scc1 L_noset1")
    A(f"buffer_load_dwordx2 {vr(vS[1],2)}, v{vG1}, s[4:7], 0 offen")
    A(f"buffer_load_dwordx2 {vr(vS[1]+2,2)}, v{vG1}, s[4:7], 0 offen offset:896")
    A.label("L_noset1")
    A(f"v_and_b32 v46, 31, v{vLane}")
    A(f"v_lshrrev_b32 v47, 5, v{vLane}")
    A("v_lshlrev_b32 v47, 4, v47")
    A(f"v_mul_u32_u24 v48, {ROW}, v46")
    A(f"v_add3_u32 v{vXA}, v48, v47, s{sM0W}")
    A(f"v_subrev_u32 v{vYA}, {ROW}, v{vXA}")
    A(f"v_add_u32 v49, {CONST0}, v47")
    A("v_cmp_eq_u32 vcc, 0, v46")
    A(f"v_add_u32 v50, {8*ROW}, v{vXA}")
    A("s_nop 0")
    A(f"v_cndmask_b32 v{vYA}, v{vYA}, v49, vcc")
    A("v_cmp_eq_u32 vcc, 8, v46")
    A(f"v_and_b32 v46, 15, v{vLane}")
    A(f"v_lshrrev_b32 v47, 4, v{vLane}")
    A(f"v_cndmask_b32 v{vXA}, v{vXA}, v50, vcc")
    A("v_add_u32 v48, 1, v46")
    A("v_and_b32 v49, 3, v48")
    A("v_and_b32 v48, 28, v48")
    A(f"v_mul_u32_u24 v49, {UCP}, v49")
    A("v_lshl_add_u32 v48, v47, 3, v48")
    A("v_lshl_add_u32 v48, v48, 1, v49")
    A(f"s_mul_i32 s3, s{sC}, {UCH}"); A(f"s_lshl_b32 s35, s{sHF}, 8"); A("s_add_u32 s3, s3, s35"); A(f"s_add_u32 s3, s3, {U0}")
    A(f"v_add_u32 v{vUA}, s3, v48")
    A(f"s_mul_i32 s48, s{sC}, {KRCH}"); A(f"s_add_u32 s48, s48, {KR0}")
    A("s_add_u32 s3, s48, s35"); A("s_add_u32 s3, s3, 480")
    A("v_lshlrev_b32 v48, 5, v46")
    A("v_lshl_add_u32 v49, v47, 4, s3")
    A(f"v_sub_u32 v{vKA}, v49, v48")
    A(f"v_bfe_u32 v46, v{vLane}, 3, 2")
    A(f"v_mul_u32_u24 v46, {4*ROW}, v46")
    A(f"v_lshrrev_b32 v47, 5, v{vLane}")
    A("v_lshl_add_u32 v46, v47, 6, v46")
    A(f"v_and_b32 v47, 7, v{vLane}")
    A("v_lshl_add_u32 v46, v47, 3, v46")
    A(f"s_and_b32 s3, s{sW}, 1"); A("s_lshl_b32 s3, s3, 7")
    A(f"v_add_u32 v{vEA}, s3, v46")
    A(f"s_mov_b32 m0, s{sM0W}")
    L2E = f2u(math.log2(math.e)); L2ELO = f2u(math.log2(math.e) - u2f(L2E))
    I2P = f2u(1/(2*math.pi)); I2PLO = f2u(1/(2*math.pi) - u2f(I2P))
    A(f"s_mov_b32 s49, {L2E:#x}"); A(f"s_mov_b32 s50, {L2ELO:#x}")
    A(f"s_mov_b32 s51, {I2P:#x}"); A(f"s_mov_b32 s52, {I2PLO:#x}")
    A("s_mov_b32 s53, 0x41000000")
    A(f"s_lshl_b32 s3, s{sC}, 4")
    A("s_waitcnt lgkmcnt(0)")
    A("s_lshr_b64 s[36:37], s[36:37], s3")
    A("s_lshl_b32 s36, s36, 16")
    A(f"s_lshl_b32 s{sD}, s38, 16"); A(f"s_and_b32 s{sD+1}, s38, 0xffff0000")
    A(f"s_lshl_b32 s{sD+2}, s39, 16"); A(f"s_and_b32 s{sD+3}, s39, 0xffff0000")
    A("v_mov_b32 v46, s36")
    A("v_mul_f32 v47, s49, v46")
    A("v_rndne_f32 v47, v47")
    A("v_fma_f32 v48, v46, s49, -v47")
    A("v_fma_f32 v48, v46, s50, v48")
    A("v_exp_f32 v48, v48")
    A("v_cvt_i32_f32 v47, v47")
    A("v_ldexp_f32 v48, v48, v47")
    A("v_cvt_pk_bf16_f32 v48, v48, v48")
    A(f"v_and_b32 v{vDt}, 0xffff0000, v48")
    A(f"v_mul_f32 v{vK1}, s49, v{vDt}")
    A(f"v_add_f32 v{vK2}, v{vDt}, v{vDt}")
    A(f"s_cmp_lg_u32 s{sHF}, 0")
    A("s_cbranch_scc1 L_w3")
    A("s_waitcnt vmcnt(5)")
    A("s_branch L_w")
    A.label("L_w3")
    A("s_waitcnt vmcnt(3)")
    A.label("L_w")
    stamp(2)

    def cmul(o, a, b, conj=False, t=None):
        if t is None: t = o
        A(f"v_pk_mul_f32 {vr(t,2)}, {vr(a,2)}, {vr(b,2)} op_sel:[0,0] op_sel_hi:[1,0]")
        A(f"v_pk_fma_f32 {vr(o,2)}, {vr(a,2)}, {vr(b,2)}, {vr(t,2)} op_sel:[1,1,0] op_sel_hi:[0,1,1] {'neg_hi' if conj else 'neg_lo'}:[1,0,0]")
    cv = [0]
    def emit_row(src, row):
        d = 78 + (cv[0] & 1); cv[0] += 1
        A(f"v_cvt_pk_bf16_f32 v{d}, v{src}, v{src+1}")
        A(f"ds_write_addtid_b32 v{d} offset:{row*ROW}")

    vZ, vW, vQ = 46, 48, 50
    vX = [52, 54, 56, 58, 60, 62, 64, 66]
    vYa, vYb = 68, 70
    t0, t1, t2, t3, t4, t5 = 72, 73, 74, 75, 76, 77

    def prep(rnd):
        A.c(f"--- prep round {rnd}")
        def unp(d, s):
            if rnd == 0: A(f"v_lshlrev_b32 v{d}, 16, v{s}")
            else: A(f"v_and_b32 v{d}, 0xffff0000, v{s}")
        unp(t0, vPar); unp(t1, vPar+1)
        A(f"v_mul_f32 v{t0}, s49, v{t0}")
        A(f"v_exp_f32 v{t0}, v{t0}")
        A(f"v_mul_f32 v{t1}, v{t1}, v{vDt}")
        A(f"v_mul_f32 v{t2}, s51, v{t1}")
        A(f"v_cvt_pk_bf16_f32 v{t0}, v{t0}, v{t0}")
        A(f"v_fma_f32 v{t3}, v{t1}, s51, -v{t2}")
        A(f"v_and_b32 v{t0}, 0xffff0000, v{t0}")
        A(f"v_fma_f32 v{t3}, v{t1}, s52, v{t3}")
        A(f"v_mul_f32 v{t0}, v{t0}, v{vK1}")
        A(f"v_mul_f32 v{t4}, s53, v{t2}")
        A(f"v_fract_f32 v{t4}, v{t4}")
        A(f"v_mul_f32 v{t5}, s53, v{t0}")
        A(f"v_fma_f32 v{t4}, v{t3}, s53, v{t4}")
        A(f"v_exp_f32 v{t5}, -v{t5}")
        A(f"v_cos_f32 v{vW}, v{t4}")
        A(f"v_sin_f32 v{vW+1}, v{t4}")
        A(f"v_fract_f32 v{t2}, v{t2}")
        A(f"v_mul_f32 v{vW}, v{vW}, v{t5}")
        A(f"v_mul_f32 v{vW+1}, v{vW+1}, v{t5}")
        A(f"v_add_f32 v{t2}, v{t2}, v{t3}")
        A(f"v_exp_f32 v{t0}, -v{t0}")
        A(f"v_cos_f32 v{vZ}, v{t2}")
        A(f"v_sin_f32 v{vZ+1}, v{t2}")
        unp(vX[0], vPar+2); unp(vX[0]+1, vPar+3)
        A(f"v_mul_f32 v{vZ}, v{vZ}, v{t0}")
        A(f"v_mul_f32 v{vZ+1}, v{vZ+1}, v{t0}")
        A(f"v_mul_f32 v{vX[0]}, v{vX[0]}, v{vK2}")
        A(f"v_mul_f32 v{vX[0]+1}, -v{vX[0]+1}, v{vK2}")

    def kmfma(ks, first):
        A(f"v_mfma_f32_32x32x16_bf16 {vr(vAcc,16)}, {vr(vXF+4*ks,4)}, {vr(vYF+4*ks,4)}, {'0' if first else vr(vAcc,16)}")

    def ychain(rnd, inter):
        emit_row(vW, 0)
        cur = vW
        for j in range(2, 33):
            nxt = vQ if j == 32 else (vYa if (j & 1) else vYb)
            cmul(nxt, cur, vW)
            if j < 32: emit_row(nxt, j-1)
            cur = nxt
            if j in inter: inter[j]()
        for ks in range(8):
            A(f"ds_read_b128 {vr(vYF+4*ks,4)}, v{vYA} offset:{32*ks}")

    def xchain():
        emit_row(vX[0], 0)
        for x in range(1, 8):
            cmul(vX[x], vX[x-1], vZ, conj=True); emit_row(vX[x], x)
        a256, a260 = vX[1], vX[3]
        cmul(a256, vX[0], vQ, True); emit_row(a256, 12)
        cmul(vYa, vX[2], vQ, True); emit_row(vYa, 13)
        cmul(a260, vX[4], vQ, True); emit_row(a260, 14)
        cmul(vYb, vX[6], vQ, True); emit_row(vYb, 15)
        cmul(vX[5], a256, vQ, True); emit_row(vX[5], 16)
        cmul(vX[7], a260, vQ, True); emit_row(vX[7], 17)
        cmul(a256, vX[5], vQ, True); emit_row(a256, 20)
        cmul(a260, vX[7], vQ, True); emit_row(a260, 21)
        cur = a256
        for slot in (18, 22, 19, 23, 24):
            nxt = vYa if cur != vYa else vYb
            cmul(nxt, cur, vQ, True); emit_row(nxt, slot); cur = nxt
        for ks in range(8):
            A(f"ds_read_b128 {vr(vXF+4*ks,4)}, v{vXA} offset:{32*ks}")

    def stage_valu_p(sig):
        if sig == 0:
            for k in range(2):
                A(f"v_mov_b32_dpp v{vP[1]+k}, v{vP[0]+k} wave_ror:1 row_mask:0xf bank_mask:0xf")
        for k in range(2):
            A(f"v_mov_b32_dpp v{vP[sig]+k}, v{vS[sig]+2+k} wave_shr:1 row_mask:0xf bank_mask:0xf")

    def stage(sig, tmp, inter=None):
        A.c(f"--- stage set {sig}")
        stage_valu_p(sig)
        A("s_lshl_b32 s3, s47, 1")
        A(f"s_add_u32 s3, s3, {M0U + 1024*sig}")
        A("s_mov_b32 m0, s3")
        n = 0
        for ch in range(4):
            dw = ch >> 1; sel = sSelHi if (ch & 1) else sSelLo
            base = U0 - M0U + ch*UCH
            e, o = tmp + 2*(ch & 1), tmp + 2*(ch & 1) + 1
            A(f"v_perm_b32 v{e}, v{vS[sig]+2+dw}, v{vS[sig]+dw}, s{sel}")
            A(f"v_perm_b32 v{o}, v{vS[sig]+dw}, v{vP[sig]+dw}, s{sel}")
            A(f"ds_write_addtid_b32 v{e} offset:{base + 0*UCP + 32}")
            A(f"ds_write_addtid_b32 v{e} offset:{base + 2*UCP + 28}")
            A(f"ds_write_addtid_b32 v{o} offset:{base + 3*UCP + 24}")
            A(f"ds_write_addtid_b32 v{o} offset:{base + 1*UCP + 28}")
            if inter: inter(ch)
        A(f"s_mov_b32 m0, s{sM0W}")

    def skipterms(sig):
        k = vSk[sig]
        for row in range(2):
            for dw in range(2):
                src = vS[sig] + 2*row + dw
                a, b = k + 4*row + 2*dw, k + 4*row + 2*dw + 1
                A(f"v_lshlrev_b32 v{a}, 16, v{src}")
                A(f"v_and_b32 v{b}, 0xffff0000, v{src}")
                A(f"v_mul_f32 v{a}, s{sD+2*dw}, v{a}")
                A(f"v_mul_f32 v{b}, s{sD+2*dw+1}, v{b}")
                A(f"v_cvt_pk_bf16_f32 v{b}, v{a}, v{b}")
                A(f"v_lshlrev_b32 v{a}, 16, v{b}")
                A(f"v_and_b32 v{b}, 0xffff0000, v{b}")

    prep(0)
    ychain(0, {})
    xchain()
    prep(1)
    A("s_waitcnt lgkmcnt(0)")
    def late_loads():
        A(f"s_cmp_eq_u32 s{sHF}, s{sRole}")
        A("s_cbranch_scc1 L_nolate")
        A(f"s_cmp_eq_u32 s{sHF}, 0")
        A("s_cbranch_scc1 L_nolate")
        A(f"buffer_load_dwordx2 {vr(vS[1],2)}, v{vG1}, s[4:7], 0 offen")
        A(f"buffer_load_dwordx2 {vr(vS[1]+2,2)}, v{vG1}, s[4:7], 0 offen offset:896")
        A.label("L_nolate")
    late_loads()
    inter = {2+2*k: (lambda k=k: kmfma(k, k == 0)) for k in range(8)}
    ychain(1, inter)
    xchain()
    stamp(3)
    A("s_waitcnt vmcnt(2)")
    A(f"s_and_b32 s3, s{sHF}, s{sRole}")
    A("s_cbranch_scc0 L_s0ok")
    A("s_waitcnt vmcnt(0)")
    A.label("L_s0ok")
    A("s_waitcnt lgkmcnt(0)")
    kmfma(0, False); kmfma(1, False)
    def it0(ch): kmfma(2+ch, False)
    stage(0, 72, it0)
    kmfma(6, False); kmfma(7, False)
    skipterms(0)
    A(f"s_cmp_lg_u32 s{sHF}, 0")
    A("s_cbranch_scc1 L_hf1_x")
    A("s_waitcnt vmcnt(0)")
    stage(1, 72)
    skipterms(1)
    for i in range(5):
        A(f"ds_write_addtid_b32 v{vAcc+8+i} offset:{i*ROW}")
    A("s_waitcnt lgkmcnt(0)")
    stamp(4)
    A("s_barrier")
    A(f"s_xor_b32 s3, s{sM0W}, 1024"); A("s_mov_b32 m0, s3"); A("s_nop 0")
    E = 240
    for i in range(8):
        A(f"ds_read_addtid_b32 v{E+i} offset:{i*ROW}")
    A(f"s_mov_b32 m0, s{sM0W}")
    A(f"v_and_b32 v248, 31, v{vLane}")
    A("v_lshlrev_b32 v248, 4, v248")
    A(f"v_lshrrev_b32 v249, 5, v{vLane}")
    A("v_lshl_add_u32 v248, v249, 3, v248")
    A(f"s_add_u32 s3, s48, {16*255+8}")
    A("v_sub_u32 v248, s3, v248")
    A(f"v_lshlrev_b32 v249, 4, v{vLane}")
    A(f"s_add_u32 s3, s48, {16*255}")
    A("v_sub_u32 v249, s3, v249")
    A("s_waitcnt lgkmcnt(0)")
    for i in range(8):
        A(f"v_add_f32 v{vAcc+i}, v{vAcc+i}, v{E+i}")
    a = vAcc
    A(f"v_cvt_pk_bf16_f32 v{E}, v{a+3}, v{a+2}")
    A(f"v_cvt_pk_bf16_f32 v{E+1}, v{a+1}, v{a}")
    A(f"v_mov_b32_dpp v{E+2}, v{a+4} wave_rol:1 row_mask:0xf bank_mask:0xf")
    A(f"ds_write_b64 v248, {vr(E,2)}")
    A(f"v_cvt_pk_bf16_f32 v{E+5}, v{a+6}, v{a+6}")
    A(f"v_cvt_pk_bf16_f32 v{E+6}, v{a+6}, v{a+5}")
    A(f"v_cvt_pk_bf16_f32 v{E+7}, v{a+4}, v{a+4}")
    A(f"v_cvt_pk_bf16_f32 v{E+4}, v{E+2}, v{a+7}")
    A("s_mov_b32 exec_lo, 0")
    A(f"ds_write_b128 v249, {vr(E+4,4)}")
    A("s_mov_b32 exec_lo, -1")
    A("s_branch L_x_done")
    A.label("L_hf1_x")
    for i in range(8):
        A(f"ds_write_addtid_b32 v{vAcc+i} offset:{i*ROW}")
    A("s_waitcnt lgkmcnt(0)")
    stamp(4)
    A("s_barrier")
    A(f"s_xor_b32 s3, s{sM0W}, 1024"); A("s_mov_b32 m0, s3"); A("s_nop 0")
    for i in range(5):
        A(f"ds_read_addtid_b32 v{E+i} offset:{i*ROW}")
    A(f"s_mov_b32 m0, s{sM0W}")
    A(f"v_lshlrev_b32 v249, 4, v{vLane}")
    A(f"s_add_u32 s3, s48, {16*63}")
    A("v_sub_u32 v249, s3, v249")
    A("s_mov_b32 vcc_lo, 0xaaaaaaaa"); A("s_mov_b32 vcc_hi, 0xaaaaaaaa")
    A("s_waitcnt lgkmcnt(0)")
    for i in range(5):
        A(f"v_add_f32 v{vAcc+8+i}, v{vAcc+8+i}, v{E+i}")
    a = vAcc + 8
    N = [E, E+1, E+2]
    A("s_nop 0")
    A(f"v_mov_b32_dpp v{N[0]}, v{a+2} wave_rol:1 row_mask:0xf bank_mask:0xf")
    A(f"v_mov_b32_dpp v{N[1]}, v{a+3} wave_rol:1 row_mask:0xf bank_mask:0xf")
    A(f"v_mov_b32_dpp v{N[2]}, v{a+4} wave_rol:1 row_mask:0xf bank_mask:0xf")
    A(f"v_mov_b32_dpp v{N[0]}, v{a} wave_shl:1 row_mask:0xf bank_mask:0xf")
    A(f"v_mov_b32_dpp v{N[1]}, v{a+2} wave_shl:1 row_mask:0xf bank_mask:0xf")
    A(f"v_mov_b32_dpp v{N[2]}, v{a+3} wave_shl:1 row_mask:0xf bank_mask:0xf")
    o = vAcc
    A(f"v_cvt_pk_bf16_f32 v{o+1}, v{a+1}, v{a+1}")
    A(f"v_cvt_pk_bf16_f32 v{o+2}, v{a+1}, v{a}")
    A(f"v_cvt_pk_bf16_f32 v{o+3}, v{a}, v{a}")
    A(f"v_cvt_pk_bf16_f32 v{o}, v{N[0]}, v{N[0]}")
    A(f"ds_write_b128 v249, {vr(o,4)} offset:{16*128}")
    for k, (src, n, dst, off) in enumerate(((a+2, N[1], o+4, 16*64), (a+3, N[2], E+4, 0))):
        A(f"v_cndmask_b32 v{E+3}, v{src}, v{n}, vcc")
        A(f"v_cvt_pk_bf16_f32 v{dst+2}, v{src}, v{src}")
        A(f"v_cvt_pk_bf16_f32 v{dst+3}, v{src}, v{src}")
        A(f"v_cvt_pk_bf16_f32 v{dst}, v{n}, v{n}")
        A(f"v_cvt_pk_bf16_f32 v{dst+1}, v{n}, v{E+3}")
        A(f"ds_write_b128 v249, {vr(dst,4)} offset:{off}")
    A.label("L_x_done")
    A("s_waitcnt lgkmcnt(0)")
    stamp(5)
    A("s_barrier")
    A(f"s_cmp_lg_u32 s{sRole}, 0")
    A("s_cbranch_scc1 L_roleB")

    ACC = [36, 40, 44]
    ET = 48
    FR0 = 64
    lab = [0]
    def epilogue(t, ts):
        G = t >> 1; w0 = 4*(G >> 1) + 2*(t & 1); sig = G & 1
        lab[0] += 1; L = f"L_ep{lab[0]}"
        A(f"s_lshr_b32 s3, s{sW}, 1")
        A(f"s_cmp_lg_u32 s3, {w0>>1}")
        A(f"s_cbranch_scc1 {L}")
        base = ((ts & 3) + 16*(ts >> 2))*ROW
        for wp in range(8):
            A(f"ds_read_b64 {vr(ET+2*wp,2)}, v{vEA} offset:{base+256*wp}")
        A("s_waitcnt lgkmcnt(0)")
        for c in range(4):
            A(f"v_pk_add_f32 {vr(ET+2*c,2)}, {vr(ET+2*c,2)}, {vr(ET+8+2*c,2)}")
        for row in range(2):
            for dw in range(2):
                p = ET + 8 + 4*row + 2*dw
                A(f"v_cvt_pk_bf16_f32 v{p+1}, v{ET+4*dw+row}, v{ET+4*dw+2+row}")
                A(f"v_lshlrev_b32 v{p}, 16, v{p+1}")
                A(f"v_and_b32 v{p+1}, 0xffff0000, v{p+1}")
                A(f"v_pk_add_f32 {vr(p,2)}, {vr(p,2)}, {vr(vSk[sig]+4*row+2*dw,2)}")
        for row in range(2):
            for dw in range(2):
                p = ET + 8 + 4*row + 2*dw
                A(f"v_cvt_pk_bf16_f32 v{ET+2*row+dw}, v{p}, v{p+1}")
            A(f"buffer_store_dwordx2 {vr(ET+2*row,2)}, v{vG1 if sig else vG0}, s[8:11], 0 offen offset:{896*row}")
        A.label(L)

    def conv(items):
        need = []
        for it in items:
            if it[0] == 'm':
                _, t, a, rho, ai, first = it
                need.append([('U', a, rho), ('K', t-a, rho)])
            else: need.append([])
        last = {}
        for i, n in enumerate(need):
            for f in n: last[f] = i
        free = list(range(FR0, 256, 4))
        reg = {}; dsn = [0]; done_at = {}
        order = []
        seen = set()
        for i, n in enumerate(need):
            for f in n:
                if f not in seen: seen.add(f); order.append((f, i))
        fence = [i for i, it in enumerate(items) if it[0] == 'call' and it[2]]
        ptr = [0]
        def issue_upto(i):
            while ptr[0] < len(order):
                f, fu = order[ptr[0]]
                if f[0] == 'U' and any(i <= x < fu for x in fence) and f[1] >= 6: break
                if fu > i and (dsn[0] - min([done_at[g] for g in need_next(i)] + [dsn[0]]) >= cfg.look): break
                if not free:
                    assert fu > i, "out of frag regs"
                    break
                r = free.pop(0); reg[f] = r
                if f[0] == 'U':
                    off = 64*(8*f[1] + f[2])
                    A(f"ds_read_b64 {vr(r,2)}, v{vUA} offset:{off}")
                    A(f"ds_read_b64 {vr(r+2,2)}, v{vUA} offset:{off+8}")
                    dsn[0] += 2
                else:
                    off = 64*(56 - 8*f[1] + f[2])
                    A(f"ds_read_b128 {vr(r,4)}, v{vKA} offset:{off}")
                    dsn[0] += 1
                done_at[f] = dsn[0]
                ptr[0] += 1
        waited = [0]
        def need_next(i):
            return [g for g in need[i] if g in done_at and done_at[g] > waited[0]]
        def wait_for(seq):
            if seq > waited[0]:
                n = min(dsn[0] - seq, 15)
                A(f"s_waitcnt lgkmcnt({n})")
                waited[0] = dsn[0] - n
        for i, it in enumerate(items):
            issue_upto(i)
            if it[0] == 'm':
                _, t, a, rho, ai, first = it
                wait_for(max(done_at[f] for f in need[i]))
                u, k = reg[need[i][0]], reg[need[i][1]]
                A(f"v_mfma_f32_16x16x32_bf16 {vr(ACC[ai],4)}, {vr(k,4)}, {vr(u,4)}, {'0' if first else vr(ACC[ai],4)}")
                for f in need[i]:
                    if last[f] == i: free.append(reg[f])
            elif it[0] == 'flush':
                if it[2]: A("s_nop 7")
                for (t, ts, ai) in it[1]:
                    for r in range(4):
                        A(f"ds_write_addtid_b32 v{ACC[ai]+r} offset:{(4*r + (ts & 3) + 16*(ts >> 2))*ROW}")
                        dsn[0] += 1
                wait_for(dsn[0])
                A("s_barrier")
                for (t, ts, ai) in it[1]:
                    epilogue(t, ts)
            else:
                it[1]()
                waited[0] = dsn[0]

    def tile_items(t, ai, amax=None, amin=0):
        out = []
        for a in range(amin, (t if amax is None else min(t, amax)) + 1):
            for rho in range(4):
                out.append(('m', t, a, rho, ai, a == 0 and rho == 0))
        return out

    def delay_flush(items, k=8):
        out = []; pend = None; cnt = 0
        for it in items:
            if it[0] == 'flush' and not it[2]:
                pend = it; cnt = 0; continue
            if pend is not None and it[0] != 'm':
                out.append(('flush', pend[1], True)); pend = None
            out.append(it)
            if pend is not None and it[0] == 'm':
                cnt += 1
                if cnt == k: out.append(pend); pend = None
        assert pend is None
        return out

    A.c("================ role A")
    lowA = [t for t in cfg.TA if t < 6]
    items = []
    for n, t in enumerate(lowA):
        items += tile_items(t, 2)
        items.append(('flush', [(t, n, 2)], False))
    for a in range(6):
        for rho in range(4):
            items.append(('m', 7, a, rho, 0, a == 0 and rho == 0))
            items.append(('m', 6, a, rho, 1, a == 0 and rho == 0))
    def stageG3():
        A(f"s_cmp_eq_u32 s{sHF}, 0")
        A("s_cbranch_scc1 L_noG3")
        A("s_waitcnt vmcnt(0)")
        stage(1, ET)
        skipterms(1)
        A.label("L_noG3")
        A("s_waitcnt lgkmcnt(0)")
        stamp(6)
        A("s_barrier")
    pos = len(items) - 8
    items.insert(pos, ('call', stageG3, True))
    for rho in range(4):
        items.append(('m', 6, 6, rho, 1, False))
        items.append(('m', 7, 6, rho, 0, False))
    for rho in range(4):
        items.append(('m', 7, 7, rho, 0, False))
    items.append(('flush', [(6, len(lowA), 1), (7, len(lowA)+1, 0)], True))
    conv(delay_flush(items))
    A("s_branch L_fin")
    A.label("L_roleB")
    items = []; n = 0
    for gi, g in enumerate(cfg.groupsB):
        fl = []
        for t in g:
            ai = n % 3
            items += tile_items(t, ai); fl.append((t, n, ai)); n += 1
        items.append(('flush', fl, gi == len(cfg.groupsB)-1))
    conv(delay_flush(items))
    A.label("L_fin")
    if cfg.prof:
        stamp(7)
        A("s_waitcnt vmcnt(0)")
        stamp(8)
        A("s_waitcnt lgkmcnt(0)")
        NS = 9
        A(f"v_cmp_eq_u32 vcc, 0, v{vLane}")
        A("s_and_saveexec_b64 s[58:59], vcc")
        A(f"s_lshl_b32 s3, s2, 3"); A(f"s_add_u32 s3, s3, s{sW}"); A(f"s_mul_i32 s3, s3, {8*NS}")
        A("v_mov_b32 v100, s3")
        for k in range(NS):
            A(f"v_mov_b32 v102, s{64+2*k}"); A(f"v_mov_b32 v103, s{65+2*k}")
            A(f"global_store_dwordx2 v100, v[102:103], s[62:63] offset:{8*k}"); A("s_nop 1")
    A.label("L_end")
    A("s_endpgm")
    head = f"""; S4D SSM convolution (generated by gen/gen1.py)
; @launch grid=(224,1,1) block=(512,1,1) lds={LDS_BYTES}
.amdgcn_target "amdgcn-amd-amdhsa--gfx950"
.text
.globl standalone__ssm_conv_s4d__prompt_kernel
.p2align 8
.type standalone__ssm_conv_s4d__prompt_kernel,@function
standalone__ssm_conv_s4d__prompt_kernel:
"""
    tail = """.section .rodata,"a"
.p2align 6
.amdhsa_kernel standalone__ssm_conv_s4d__prompt_kernel
  .amdhsa_next_free_vgpr 256
  .amdhsa_next_free_sgpr 102
  .amdhsa_accum_offset 256
  .amdhsa_group_segment_fixed_size 0
  .amdhsa_kernarg_size 80
  .amdhsa_user_sgpr_count 2
  .amdhsa_user_sgpr_kernarg_segment_ptr 1
  .amdhsa_system_sgpr_workgroup_id_x 1
.end_amdhsa_kernel
"""
    return head + A.text() + tail

if __name__ == "__main__":
    cfg = Cfg()
    out = sys.argv[1]
    for a in sys.argv[2:]:
        k, v = a.split("=", 1); setattr(cfg, k, eval(v))
    open(out, "w").write(gen(cfg))
```

```python
import re
TRANS = ("v_exp_f32","v_log_f32","v_rcp_f32","v_rsq_f32","v_sqrt_f32","v_sin_f32","v_cos_f32")
def regs(tok):
    tok = tok.strip().lstrip("-")
    tok = re.sub(r"^abs\((.*)\)$", r"\1", tok).strip("|")
    m = re.fullmatch(r"([vs])(\d+)", tok)
    if m: return [(m.group(1), int(m.group(2)))]
    m = re.fullmatch(r"([vs])\[(\d+):(\d+)\]", tok)
    if m: return [(m.group(1), i) for i in range(int(m.group(2)), int(m.group(3))+1)]
    if tok in ("vcc","vcc_lo","vcc_hi"): return [("s", "vcc")]
    if tok == "m0": return [("s","m0")]
    if tok in ("exec","exec_lo","exec_hi"): return [("s","exec")]
    return []
def parse(line):
    s = line.split(";")[0].strip()
    if not s or s.endswith(":") or s.startswith("."): return None
    parts = s.split(None, 1)
    op = parts[0]; rest = parts[1] if len(parts) > 1 else ""
    ops = []; cur = ""; depth = 0
    for ch in rest:
        if ch == "[": depth += 1
        if ch == "]": depth -= 1
        if ch == "," and depth == 0: ops.append(cur.strip()); cur = ""
        else: cur += ch
    if cur.strip(): ops.append(cur.strip())
    if ops:
        last = ops[-1].split()
        ops[-1] = last[0] if last else ""
    d = dict(op=op, w=[], r=[], kind="other")
    if op.startswith("v_mfma"):
        d["kind"] = "mfma"; d["w"] = regs(ops[0]); d["ab"] = regs(ops[1]) + regs(ops[2]); d["c"] = regs(ops[3]); d["r"] = d["ab"] + d["c"]
        d["passes"] = 8 if "32x32" in op else 4
    elif op.startswith("v_"):
        d["kind"] = "valu"
        d["w"] = regs(ops[0]); srcs = ops[1:]
        if op.startswith("v_cmp"): pass
        for o in srcs: d["r"] += regs(o)
        if op.startswith(("v_fmac","v_dot2c")) or "dpp" in op or op.startswith("v_writelane"): d["r"] += regs(ops[0])
        d["trans"] = op.replace("_e32","").replace("_e64","") in TRANS
        d["dpp"] = "dpp" in op
        d["rl"] = op.startswith(("v_readlane","v_readfirstlane"))
    elif op.startswith("ds_"):
        d["kind"] = "ds"
        if "read" in op:
            d["w"] = regs(ops[0])
            for o in ops[1:]: d["r"] += regs(o)
        else:
            for o in ops: d["r"] += regs(o)
        if "addtid" in op: d["r"].append(("s","m0"))
    elif op.startswith(("buffer_","global_")):
        d["kind"] = "vmem"
        if "load" in op:
            d["w"] = regs(ops[0])
            for o in ops[1:]: d["r"] += regs(o)
        else:
            for o in ops: d["r"] += regs(o)
    elif op.startswith("s_"):
        d["kind"] = "salu"
        if op == "s_nop": d["nop"] = int(ops[0]) + 1
        elif op.startswith(("s_cmp","s_cbranch","s_branch","s_waitcnt","s_barrier","s_endpgm","s_setprio","s_sleep")): pass
        else:
            d["w"] = regs(ops[0])
            for o in ops[1:]: d["r"] += regs(o)
    return d
def need(p, c):
    n = 0
    pw, cr, cw = set(p["w"]), set(c["r"]), set(c["w"])
    if p["kind"] == "valu":
        vw = {x for x in pw if x[0] == "v"}; sw = pw - vw
        if c["kind"] == "valu":
            if p["trans"] and not c["trans"] and vw & cr: n = max(n, 1)
            if c["dpp"] and vw & cr: n = max(n, 2)
            if c["rl"] and vw & cr: n = max(n, 1)
            if sw & cr: n = max(n, 4 if c["rl"] else 2)
        if c["kind"] == "mfma" and vw & cr: n = max(n, 2)
        if c["kind"] == "vmem" and sw & cr: n = max(n, 5)
        if c["kind"] == "salu" and sw & cr: n = max(n, 1)
    if p["kind"] == "salu" and ("s","m0") in pw and c["kind"] == "ds" and ("s","m0") in cr: n = max(n, 1)
    if p["kind"] == "mfma":
        big = 12 if p["passes"] == 8 else 8
        if c["kind"] == "mfma":
            if pw & set(c["ab"]): n = max(n, big)
            cc = set(c["c"])
            if pw & cc and not (cc == pw and c["passes"] == p["passes"]): n = max(n, big-2)
            if pw & cw and not (pw & cc): n = max(n, big)
        elif c["kind"] in ("valu","ds","vmem"):
            if pw & (cr | cw): n = max(n, big)
            if c["kind"] == "valu" and set(p["c"]) & cw: n = max(n, 7 if p["passes"] == 8 else 3)
    if p["kind"] == "vmem" and "store" in p["op"] and ("x4" in p["op"] or "x3" in p["op"]) and c["kind"] == "valu" and set(p["r"]) & cw: n = max(n, 2)
    return n
def pad(lines):
    out = []; hist = []
    nins = 0
    for ln in lines:
        c = parse(ln)
        if c is None:
            out.append(ln); continue
        req = 0; dist = 0
        for p in reversed(hist):
            r = need(p, c) - dist
            if r > req: req = r
            dist += p.get("nop", 1)
            if dist >= 12: break
        if req > 0:
            out.append(f"    s_nop {req-1}    ; hz"); hist.append(dict(op="s_nop", w=[], r=[], kind="salu", nop=req)); nins += 1
        out.append(ln); hist.append(c)
        if len(hist) > 16: hist.pop(0)
    return out, nins
```

```python
import sys, struct, math, os
sys.path.insert(0, os.path.dirname(os.path.abspath(__file__)))
import hz

def f2u(x): return struct.unpack("<I", struct.pack("<f", x))[0]
def u2f(u): return struct.unpack("<f", struct.pack("<I", u))[0]

class Cfg:
    prof = False
    profk = False
    profc = False
    cap = 3
    s0b_hi = 6
    s1_lo = 40
    s1_hi = 72
    mf0_start = 90
    mf0_every = 4
    npo = (2, 4)
    npy = (0, 2)
    no0 = 8
    ytail = 3
    syncA = (23, 51)
    syncB = (26, 40, 59)
    yb = 20
    pkdl = 12
    la = 99
    old0 = 4
    fdelay = 5
    sdelay = 6
    g3int = 0
    cpf = 88
    dynprio = True
    lead = 1
    yburst = (12, 10, 10, 10)
    ybv = (8, 20, 20, 20)
    ringn = 8

ROW = 2064; U0 = 64000; UCP = 4160; UCH = 4*UCP
KR0 = U0 + 4*UCH; KRCH = 4608
CONST0 = KR0 + 4*KRCH + 240
LDS_BYTES = CONST0 + 272
M0U = 61000
KSC = 13

def vr(a, n=1): return f"v{a}" if n == 1 else f"v[{a}:{a+n-1}]"

def gen(cfg):
    L = []
    def A(s): L.append("    " + s)
    def label(s): L.append(s + ":")
    def C(s): L.append("    ; " + s)
    def stamp(k, on=True):
        if cfg.prof and on: A(f"s_memtime s[{64+2*k}:{65+2*k}]")
    lab = [0]
    def newlab(p):
        lab[0] += 1; return f"L_{p}{lab[0]}"

    vLane, vG0, vG1 = 1, 2, 3
    vS = [4, 8]; vP = [12, 14]
    vUA, vKA, vEA, vTmp = 16, 17, 18, 19
    vSk = [20, 28]
    vPar = 36; vYA, vXA = 40, 41
    vK1, vF, vDt, vN = 42, 43, 44, 45
    vYF = [96, 128]; vXF = 192; vAcc = 224; E = 240
    sW, sC, sHF, sRole = 32, 33, 34, 15
    sSelLo, sSelHi, sM0W, sD = 44, 45, 46, 40
    sR0, sKRb = 47, 48
    sL2E, sL2ELO, sI2P, sI2PLO, s8 = 49, 50, 51, 52, 53
    sLate, sSc, sUn = 54, 55, 56

    A("s_load_dwordx16 s[16:31], s[0:1], 0")
    if cfg.prof: A("s_load_dwordx2 s[62:63], s[0:1], 72")
    stamp(0)
    A("s_cmp_ge_u32 s2, 224")
    A("s_cbranch_scc1 L_end")
    if cfg.cpf:
        A("s_getpc_b64 s[60:61]")
        label("L_pc")
        A("s_bfe_u32 s3, s2, 0x10003")
        A(f"s_mul_i32 s3, s3, {cfg.cpf*128}")
        A("v_lshl_add_u32 v46, v0, 7, s3")
        A("v_min_u32 v46, L_end-L_pc, v46")
        A(f"v_cmp_gt_u32 vcc, {cfg.cpf}, v0")
        A("s_and_saveexec_b64 s[58:59], vcc")
        A("s_cbranch_execz L_nocpf")
        A("global_load_dword v255, v46, s[60:61]")
        label("L_nocpf")
        A("s_mov_b64 exec, -1")
    A(f"v_lshrrev_b32 v{vTmp}, 6, v0")
    A(f"v_and_b32 v{vLane}, 63, v0")
    A("s_and_b32 s12, s2, 7")
    A(f"v_readfirstlane_b32 s{sW}, v{vTmp}")
    A("s_lshr_b32 s13, s2, 3")
    if cfg.lead: A(f"s_xor_b32 s{sW}, s{sW}, 4")
    A("s_mul_i32 s12, s12, 112")
    A("s_lshr_b32 s14, s13, 1")
    A(f"s_and_b32 s{sRole}, s13, 1")
    A("s_lshl_b32 s14, s14, 3")
    A("s_add_u32 s14, s14, s12")
    A(f"s_and_b32 s{sC}, s{sW}, 3")
    A(f"s_lshr_b32 s{sHF}, s{sW}, 2")
    A("s_lshl_b32 s3, s14, 8")
    A(f"s_lshl_b32 s35, s{sC}, 9"); A("s_add_u32 s3, s3, s35")
    A(f"s_lshl_b32 s35, s{sHF}, 8"); A("s_add_u32 s3, s3, s35")
    A(f"v_lshl_add_u32 v46, v{vLane}, 2, s3")
    A("s_mov_b32 s6, 1835008"); A("s_mov_b32 s7, 0x20000")
    A(f"s_xor_b32 s3, s{sW}, 4"); A(f"s_lshl_b32 s{sR0}, s3, 7")
    A(f"v_lshl_add_u32 v47, v{vLane}, 1, s{sR0}")
    A("v_mul_u32_u24 v47, 896, v47")
    A(f"v_add_u32 v{vG0}, s14, v47")
    A(f"s_lshl_b32 s3, s{sW}, 7"); A("s_add_u32 s3, s3, 1024")
    A(f"v_lshl_add_u32 v47, v{vLane}, 1, s3")
    A("v_mul_u32_u24 v47, 896, v47")
    A(f"v_add_u32 v{vG1}, s14, v47")
    A(f"s_lshl_b32 s3, s13, 3"); A(f"s_add_u32 s3, s3, s{sW}"); A("s_mul_i32 s3, s3, 10")
    A(f"v_add_u32 v48, -1, v{vLane}")
    A("v_and_b32 v49, 1, v48")
    A("v_lshrrev_b32 v48, 1, v48")
    A("v_add_u32 v48, s3, v48")
    A("v_mul_u32_u24 v48, 896, v48")
    A("v_mul_u32_u24 v49, 104, v49")
    A("v_add3_u32 v48, v48, v49, s12")
    A(f"v_cmp_eq_u32 vcc, 0, v{vLane}")
    A(f"v_subrev_u32 v49, 896, v{vG0}")
    A(f"v_subrev_u32 v50, {127*896}, v{vG1}")
    A("v_cndmask_b32 v48, v48, v49, vcc")
    A(f"v_cmp_eq_u32 vcc, 63, v{vLane}")
    A("s_waitcnt lgkmcnt(0)")
    stamp(1)
    for i in range(4):
        A(f"global_load_dword v{vPar+i}, v46, s[{18+2*i}:{19+2*i}]")
    A("s_load_dwordx2 s[36:37], s[26:27], s14")
    A("s_load_dwordx2 s[38:39], s[28:29], s14")
    A("v_cndmask_b32 v48, v48, v50, vcc")
    A("s_mov_b32 s4, s16"); A("s_mov_b32 s5, s17")
    A("s_mov_b32 exec_lo, 0x1fffff"); A("s_mov_b32 exec_hi, 0x80000000")
    A("s_barrier")
    A(f"buffer_load_dwordx2 {vr(vP[0],2)}, v48, s[4:7], 0 offen")
    A("s_mov_b64 exec, -1")
    A("s_barrier")
    A(f"buffer_load_dwordx2 {vr(vS[0],2)}, v{vG0}, s[4:7], 0 offen")
    A(f"s_cmp_lg_u32 s{sHF}, 0"); A("s_cbranch_scc1 L_nos0b")
    A(f"buffer_load_dwordx2 {vr(vS[0]+2,2)}, v{vG0}, s[4:7], 0 offen offset:896")
    label("L_nos0b")
    A("s_mov_b32 s8, s30"); A("s_mov_b32 s9, s31")
    A("s_mov_b32 s10, 1835008"); A("s_mov_b32 s11, 0x20000")
    A(f"s_mov_b32 s{sSelLo}, 0x05040100"); A(f"s_mov_b32 s{sSelHi}, 0x07060302")
    A(f"s_lshl_b32 s{sM0W}, s{sW}, 8")
    A(f"s_lshl_b32 s{sR0}, s{sR0}, 1")
    A("v_mov_b32 v51, 0")
    A("v_lshrrev_b32 v52, 7, v0"); A("v_and_b32 v53, 127, v0")
    A(f"v_mul_u32_u24 v52, {KRCH}, v52")
    A("v_lshl_add_u32 v52, v53, 2, v52")
    A(f"v_add_u32 v52, {KR0+4096}, v52")
    A("ds_write_b32 v52, v51")
    A("v_lshrrev_b32 v54, 3, v53"); A("v_and_b32 v53, 7, v53")
    A("v_and_b32 v55, 3, v54"); A("v_add_u32 v55, 1, v55"); A("v_lshrrev_b32 v55, 1, v55")
    A("v_sub_u32 v55, 7, v55"); A("v_min_u32 v53, v53, v55")
    A(f"v_mul_u32_u24 v54, {UCP}, v54")
    A("v_lshl_add_u32 v54, v53, 2, v54")
    A(f"ds_write_b32 v54, v51 offset:{U0}")
    A(f"v_lshlrev_b32 v55, 2, v{vLane}")
    A(f"v_add_u32 v55, {CONST0}, v55")
    A("v_mov_b32 v56, 0x3c00")
    A("ds_write_b32 v55, v56")
    A(f"v_and_b32 v46, 31, v{vLane}")
    A(f"v_lshrrev_b32 v47, 5, v{vLane}")
    A("v_lshlrev_b32 v47, 4, v47")
    A(f"v_mul_u32_u24 v48, {ROW}, v46")
    A(f"v_add3_u32 v{vXA}, v48, v47, s{sM0W}")
    A("v_cmp_eq_u32 vcc, 0, v46")
    A(f"v_subrev_u32 v{vYA}, {ROW}, v{vXA}")
    A(f"v_add_u32 v49, {CONST0}, v47")
    A(f"v_add_u32 v50, {8*ROW}, v{vXA}")
    A(f"v_cndmask_b32 v{vYA}, v{vYA}, v49, vcc")
    A("v_cmp_eq_u32 vcc, 8, v46")
    A(f"v_and_b32 v46, 15, v{vLane}")
    A(f"v_lshrrev_b32 v47, 4, v{vLane}")
    A(f"v_cndmask_b32 v{vXA}, v{vXA}, v50, vcc")
    A("v_add_u32 v48, 1, v46")
    A("v_and_b32 v49, 3, v48")
    A("v_and_b32 v48, 28, v48")
    A(f"v_mul_u32_u24 v49, {UCP}, v49")
    A("v_lshl_add_u32 v48, v47, 3, v48")
    A("v_lshl_add_u32 v48, v48, 1, v49")
    A(f"s_mul_i32 s3, s{sC}, {UCH}"); A(f"s_lshl_b32 s35, s{sHF}, 8"); A("s_add_u32 s3, s3, s35"); A(f"s_add_u32 s3, s3, {U0}")
    A(f"v_add_u32 v{vUA}, s3, v48")
    A(f"s_mul_i32 s{sKRb}, s{sC}, {KRCH}"); A(f"s_add_u32 s{sKRb}, s{sKRb}, {KR0}")
    A(f"s_add_u32 s3, s{sKRb}, s35"); A("s_add_u32 s3, s3, 480")
    A("v_lshlrev_b32 v48, 5, v46")
    A("v_lshl_add_u32 v49, v47, 4, s3")
    A(f"v_sub_u32 v{vKA}, v49, v48")
    A(f"v_bfe_u32 v46, v{vLane}, 3, 2")
    A(f"v_mul_u32_u24 v46, {4*ROW}, v46")
    A(f"v_lshrrev_b32 v47, 5, v{vLane}")
    A("v_lshl_add_u32 v46, v47, 6, v46")
    A(f"v_and_b32 v47, 7, v{vLane}")
    A("v_lshl_add_u32 v46, v47, 3, v46")
    A(f"s_and_b32 s3, s{sW}, 1"); A("s_lshl_b32 s3, s3, 7")
    A(f"v_add_u32 v{vEA}, s3, v46")
    A(f"v_and_b32 v250, 31, v{vLane}")
    A("v_lshlrev_b32 v250, 4, v250")
    A(f"v_lshrrev_b32 v251, 5, v{vLane}")
    A("v_lshl_add_u32 v250, v251, 3, v250")
    A(f"s_add_u32 s3, s{sKRb}, {16*255+8}")
    A("v_sub_u32 v250, s3, v250")
    A(f"v_lshlrev_b32 v251, 4, v{vLane}")
    A(f"s_add_u32 s3, s{sKRb}, {16*63}")
    A("v_sub_u32 v251, s3, v251")
    A(f"s_mov_b32 m0, s{sM0W}")
    L2E = f2u(math.log2(math.e)); L2ELO = f2u(math.log2(math.e) - u2f(L2E))
    I2P = f2u(1/(2*math.pi)); I2PLO = f2u(1/(2*math.pi) - u2f(I2P))
    A(f"s_mov_b32 s{sL2E}, {L2E:#x}"); A(f"s_mov_b32 s{sL2ELO}, {L2ELO:#x}")
    A(f"s_mov_b32 s{sI2P}, {I2P:#x}"); A(f"s_mov_b32 s{sI2PLO}, {I2PLO:#x}")
    A(f"s_mov_b32 s{s8}, 0x41000000")
    A(f"s_andn2_b32 s{sLate}, s{sHF}, s{sRole}")
    A(f"s_lshl_b32 s3, s{sC}, 4")
    A("s_setprio 1"); A(f"s_cmp_lg_u32 s{sHF}, 0"); A("s_cbranch_scc1 L_np"); A("s_setprio 2"); label("L_np")
    A("s_waitcnt lgkmcnt(0)")
    A("s_lshr_b64 s[36:37], s[36:37], s3")
    A("s_lshl_b32 s36, s36, 16")
    A("v_mov_b32 v46, s36")
    A(f"v_mul_f32 v47, s{sL2E}, v46")
    A("v_rndne_f32 v47, v47")
    A(f"v_fma_f32 v48, v46, s{sL2E}, -v47")
    A(f"v_fma_f32 v48, v46, s{sL2ELO}, v48")
    A("v_exp_f32 v48, v48")
    A("v_cvt_i32_f32 v47, v47")
    A("v_ldexp_f32 v48, v48, v47")
    A("v_cvt_pk_bf16_f32 v48, v48, v48")
    A(f"v_and_b32 v{vDt}, 0xffff0000, v48")
    A(f"v_mul_f32 v{vK1}, s{sL2E}, v{vDt}")
    A(f"s_lshl_b32 s{sD}, s38, 16"); A(f"s_and_b32 s{sD+1}, s38, 0xffff0000")
    A(f"s_lshl_b32 s{sD+2}, s39, 16"); A(f"s_and_b32 s{sD+3}, s39, 0xffff0000")
    A("s_waitcnt vmcnt(4)")
    stamp(2)

    P = []
    def op(txt, cost=1, rel=0, dl=None):
        P.append(dict(txt=txt, cost=cost, rel=rel, dl=dl, ds=txt.startswith("ds_")))
    W = [46, 48]; Z = [50, 52]
    t0, t1, t2, t3, t4, t5 = 54, 55, 56, 57, 58, 59
    p1, p2, p4, q1, q2, q4 = 60, 61, 62, 63, 64, 65
    yreg = {j: 19 + j for j in range(1, 17)}
    xreg = {k: 66 + k for k in range(8)}
    xreg.update({256: 74, 260: 75, 512: 76, 768: 77, 1024: 78})
    n1, n2, n3 = 79, 94, 95
    ring = list(range(80, 80 + cfg.ringn)); rp = [0]
    def rnext():
        r = ring[rp[0] % len(ring)]; rp[0] += 1; return r
    def sq(o, a):
        op(f"v_pk_mul_f32 {vr(o,2)}, {vr(a,2)}, {vr(a,2)} op_sel:[0,0] op_sel_hi:[1,0]")
        op(f"v_pk_fma_f32 {vr(o,2)}, {vr(a,2)}, {vr(a,2)}, {vr(o,2)} op_sel:[1,1,0] op_sel_hi:[0,1,1] neg_lo:[1,0,0]")
    def cv(d, a): op(f"v_cvt_pk_f16_f32 v{d}, v{a}, v{a+1}")
    def cm(o, a, b, conj=False):
        op(f"v_pk_mul_f16 v{o}, v{a}, v{b} op_sel:[0,0] op_sel_hi:[1,0]")
        op(f"v_pk_fma_f16 v{o}, v{a}, v{b}, v{o} op_sel:[1,1,0] op_sel_hi:[0,1,1] {'neg_hi' if conj else 'neg_lo'}:[1,0,0]")
    def unp(rnd, d, s_):
        op(f"v_lshlrev_b32 v{d}, 16, v{s_}") if rnd == 0 else op(f"v_and_b32 v{d}, 0xffff0000, v{s_}")
    def wrow(reg, row): op(f"ds_write_addtid_b32 v{reg} offset:{row*ROW}")
    def PW(rnd):
        unp(rnd, t0, vPar); unp(rnd, t1, vPar+1)
        op(f"v_mul_f32 v{t0}, s{sL2E}, v{t0}")
        op(f"v_exp_f32 v{t0}, v{t0}", 2)
        op(f"v_mul_f32 v{t1}, v{t1}, v{vDt}")
        op(f"v_mul_f32 v{t2}, s{sI2P}, v{t1}")
        op(f"v_cvt_pk_bf16_f32 v{t0}, v{t0}, v{t0}")
        op(f"v_fma_f32 v{t3}, v{t1}, s{sI2P}, -v{t2}")
        op(f"v_and_b32 v{t0}, 0xffff0000, v{t0}")
        op(f"v_fma_f32 v{t3}, v{t1}, s{sI2PLO}, v{t3}")
        op(f"v_mul_f32 v{t0}, v{t0}, v{vK1}")
        op(f"v_mul_f32 v{t4}, s{s8}, v{t2}")
        op(f"v_fract_f32 v{t4}, v{t4}")
        op(f"v_mul_f32 v{t5}, s{s8}, v{t0}")
        op(f"v_fma_f32 v{t4}, v{t3}, s{s8}, v{t4}")
        op(f"v_exp_f32 v{t5}, -v{t5}", 2)
        op(f"v_cos_f32 v{W[0]}, v{t4}", 2)
        op(f"v_sin_f32 v{W[0]+1}, v{t4}", 2)
        op(f"v_mul_f32 v{W[0]}, v{W[0]}, v{t5}")
        op(f"v_mul_f32 v{W[0]+1}, v{W[0]+1}, v{t5}")
    def NORM():
        op(f"v_and_b32 v{vN}, 0x7fff7fff, v{vPar+2}", rel=cfg.s0b_hi+1); op(f"v_and_b32 v{n1}, 0x7fff7fff, v{vPar+3}", rel=cfg.s0b_hi+1)
        op(f"v_pk_max_u16 v{vN}, v{vN}, v{n1}")
        op(f"v_lshlrev_b32 v{n1}, 16, v{vN}"); op(f"v_max_u32 v{vN}, v{vN}, v{n1}")
        for m in ("row_shr:1 row_mask:0xf", "row_shr:2 row_mask:0xf", "row_shr:4 row_mask:0xf", "row_shr:8 row_mask:0xf", "row_bcast:15 row_mask:0xa", "row_bcast:31 row_mask:0xc"):
            op(f"v_max_u32_dpp v{vN}, v{vN}, v{vN} {m} bank_mask:0xf")
        op(f"v_readlane_b32 s57, v{vN}, 63")
        op("s_lshr_b32 s57, s57, 23", 0); op("s_max_u32 s57, s57, 16", 0)
        op(f"s_sub_u32 s{sSc}, {254+KSC}, s57", 0); op(f"s_lshl_b32 s{sSc}, s{sSc}, 23", 0)
        op(f"s_sub_u32 s{sUn}, s57, {KSC-1}", 0); op(f"s_lshl_b32 s{sUn}, s{sUn}, 23", 0)
        op(f"v_mul_f32 v{vF}, s{sUn}, v{vDt}")
    def FX(rnd):
        sq(W[1], W[0]); cv(q1, W[1]); sq(W[0], W[1]); cv(q2, W[0]); sq(W[1], W[0]); cv(q4, W[1])
        op(f"v_fract_f32 v{t2}, v{t2}")
        op(f"v_add_f32 v{t2}, v{t2}, v{t3}")
        op(f"v_exp_f32 v{t0}, -v{t0}", 2)
        op(f"v_cos_f32 v{Z[0]}, v{t2}", 2)
        op(f"v_sin_f32 v{Z[0]+1}, v{t2}", 2)
        op(f"v_mul_f32 v{Z[0]}, v{Z[0]}, v{t0}")
        op(f"v_mul_f32 v{Z[0]+1}, v{Z[0]+1}, v{t0}")
        cv(p1, Z[0]); sq(Z[1], Z[0]); cv(p2, Z[1]); sq(Z[0], Z[1]); cv(p4, Z[0])
        if rnd == 0: NORM()
        unp(rnd, n2, vPar+2); unp(rnd, n3, vPar+3)
        if rnd == 0: P[-1]['rel'] = P[-2]['rel'] = cfg.s0b_hi+1
        op(f"v_mul_f32 v{n2}, s{sSc}, v{n2}"); op(f"v_mul_f32 v{n3}, s{sSc}, v{n3}")
        op(f"v_cvt_pk_f16_f32 v{xreg[0]}, v{n2}, -v{n3}")
    def Yrows(rnd):
        cv(yreg[1], W[0]); wrow(yreg[1], 0)
        cur = 0
        for j in (2, 4, 8, 16):
            sq(W[1-cur], W[cur]); cv(yreg[j], W[1-cur]); wrow(yreg[j], j-1); cur = 1-cur
        FX(rnd)
        for hi in (2, 4, 8):
            for lo in range(1, hi):
                cm(yreg[hi+lo], yreg[lo], yreg[hi]); wrow(yreg[hi+lo], hi+lo-1)
        for lo in range(1, 16):
            r = rnext(); cm(r, yreg[lo], yreg[16]); wrow(r, 16+lo-1)
    slot = {256: 12, 258: 13, 260: 14, 262: 15, 512: 16, 516: 17, 1024: 18, 1536: 19, 768: 20, 772: 21, 1280: 22, 1792: 23, 2048: 24}
    for k in range(8): slot[k] = k
    def Xrows():
        wrow(xreg[0], 0)
        for (x, a, b) in ((256,0,q1),(512,0,q2),(1024,0,q4),(768,256,q2),(1280,256,q4),(1536,512,q4),(1792,768,q4),(2048,1024,q4),
                          (1,0,p1),(2,0,p2),(3,1,p2),(4,0,p4),(5,1,p4),(6,2,p4),(7,3,p4),
                          (258,2,q1),(260,4,q1),(262,6,q1),(516,4,q2),(772,260,q2)):
            r = xreg[x] if x in xreg else rnext()
            cm(r, xreg[a], b, True); wrow(r, slot[x])
    def reads(base, addr):
        for ks in range(8): op(f"ds_read_b128 {vr(base+4*ks,4)}, v{addr} offset:{32*ks}")
    def kmf(rnd, ks):
        return f"v_mfma_f32_32x32x16_f16 {vr(vAcc,16)}, {vr(vXF+4*ks,4)}, {vr(vYF[rnd]+4*ks,4)}, {'0' if (rnd == 0 and ks == 0) else vr(vAcc,16)}"
    PW(0); Yrows(0); reads(vYF[0], vYA); Xrows(); reads(vXF, vXA)
    for ks in range(8):
        g = cfg.mf0_start + cfg.mf0_every*ks
        op(kmf(0, ks), 2, rel=g, dl=g)
    PW(1); Yrows(1); reads(vYF[1], vYA); Xrows(); reads(vXF, vXA)
    lw = {}; lr = {}
    nds = 0
    for i, o in enumerate(P):
        d = hz.parse(o['txt']); o['d'] = d; deps = set()
        for r in d['r']:
            if r in lw: deps.add(lw[r])
        for r in d['w']:
            if r in lw: deps.add(lw[r])
            deps |= set(lr.get(r, []))
        deps.discard(i); o['deps'] = deps
        for r in d['r']: lr.setdefault(r, []).append(i)
        for r in d['w']: lw[r] = i; lr[r] = []
        if o['ds']: o['k'] = nds; o['dl'] = nds; nds += 1
    for o in P:
        if o['dl'] is None: o['dl'] = nds - 8
        if 'pk_' in o['txt'] and '_f32' in o['txt']: o['dl'] = min(o['dl'], cfg.mf0_start - cfg.pkdl)
    for i in range(len(P)-1, -1, -1):
        for j in P[i]['deps']:
            if not P[j]['ds']: P[j]['dl'] = min(P[j]['dl'], P[i]['dl'])
    def ldpair(cond, which):
        Lb = newlab("ld")
        A(cond); A(f"s_cbranch_scc1 {Lb}")
        for x in which: A(x)
        label(Lb)
    S1 = [f"buffer_load_dwordx2 {vr(vS[1],2)}, v{vG1}, s[4:7], 0 offen", f"buffer_load_dwordx2 {vr(vS[1]+2,2)}, v{vG1}, s[4:7], 0 offen offset:896"]
    done = set(); waited = [0]; recent = []
    DSL = [i for i, o in enumerate(P) if o['ds']]
    kst = {31: 9, 39: 10, 60: 11, 68: 12, 99: 13, 107: 14, 128: 15}
    def emit(i, k):
        o = P[i]
        for j in o['deps']:
            pj = P[j]
            if pj['ds'] and 'read' in pj['txt'] and set(pj['d']['w']) & set(o['d']['r']) and pj['k'] + 1 > waited[0]:
                n = min(k - pj['k'] - 1, 15); A(f"s_waitcnt lgkmcnt({n})"); waited[0] = k - n
        A(o['txt']); done.add(i); recent.append(o['d'])
    def hazard(o):
        dist = 0
        for p in reversed(recent[-3:]):
            if hz.need(p, o['d']) > dist: return True
            dist += 1
        return False
    for k, di in enumerate(DSL):
        used = 0
        while True:
            ready = [i for i, o in enumerate(P) if i not in done and not o['ds'] and o['deps'] <= done and o['rel'] <= k]
            if not ready: break
            urgent = [i for i in ready if P[i]['dl'] <= k]
            cand = urgent if urgent else [i for i in ready if used + P[i]['cost'] <= cfg.cap and not hazard(P[i])]
            if not cand: break
            cand.sort(key=lambda i: (hazard(P[i]), P[i]['dl'], i))
            emit(cand[0], k); used += P[cand[0]]['cost']
        assert P[di]['deps'] <= done, (k, P[di]['txt'])
        if k in kst: stamp(kst[k], cfg.profk)
        if k == cfg.s0b_hi:
            ldpair(f"s_cmp_eq_u32 s{sHF}, 0", [f"buffer_load_dwordx2 {vr(vS[0]+2,2)}, v{vG0}, s[4:7], 0 offen offset:896"])
            A("s_waitcnt vmcnt(3)")
        if k == cfg.s1_lo: ldpair(f"s_cmp_lg_u32 s{sHF}, 0", S1)
        if k == cfg.s1_hi: ldpair(f"s_cmp_eq_u32 s{sLate}, 0", S1)
        emit(di, k)
    assert len(done) == len(P)
    stamp(3)

    def stage_ops(sig, tmp):
        o = []
        if sig == 0:
            for k in range(2):
                o.append(f"v_mov_b32_dpp v{vP[1]+k}, v{vP[0]+k} wave_ror:1 row_mask:0xf bank_mask:0xf")
        for k in range(2):
            o.append(f"v_mov_b32_dpp v{vP[sig]+k}, v{vS[sig]+2+k} wave_shr:1 row_mask:0xf bank_mask:0xf")
        if sig == 0: o.append(f"s_add_u32 s3, s{sR0}, {M0U}")
        else: o.append(f"s_add_u32 s3, s{sM0W}, {M0U + 2048}")
        o.append("s_mov_b32 m0, s3")
        for ch in range(4):
            dw = ch >> 1; sel = sSelHi if (ch & 1) else sSelLo
            base = U0 - M0U + ch*UCH
            e, od = tmp + 2*(ch & 1), tmp + 2*(ch & 1) + 1
            o.append(f"v_perm_b32 v{e}, v{vS[sig]+2+dw}, v{vS[sig]+dw}, s{sel}")
            o.append(f"v_perm_b32 v{od}, v{vS[sig]+dw}, v{vP[sig]+dw}, s{sel}")
            o.append(f"ds_write_addtid_b32 v{e} offset:{base + 0*UCP + 32}")
            o.append(f"ds_write_addtid_b32 v{e} offset:{base + 2*UCP + 28}")
            o.append(f"ds_write_addtid_b32 v{od} offset:{base + 3*UCP + 24}")
            o.append(f"ds_write_addtid_b32 v{od} offset:{base + 1*UCP + 28}")
        o.append(f"s_mov_b32 m0, s{sM0W}")
        return o
    def skip_ops(sig):
        k = vSk[sig]; o = []
        for row in range(2):
            for dw in range(2):
                src = vS[sig] + 2*row + dw
                a, b = k + 4*row + 2*dw, k + 4*row + 2*dw + 1
                o += [f"v_lshlrev_b32 v{a}, 16, v{src}", f"v_and_b32 v{b}, 0xffff0000, v{src}",
                      f"v_mul_f32 v{a}, s{sD+2*dw}, v{a}", f"v_mul_f32 v{b}, s{sD+2*dw+1}, v{b}",
                      f"v_cvt_pk_bf16_f32 v{b}, v{a}, v{b}", f"v_lshlrev_b32 v{a}, 16, v{b}", f"v_and_b32 v{b}, 0xffff0000, v{b}"]
        return o

    FR0 = 64
    pre = [('U', a, rho, 0) for a in range(6) for rho in range(4)]
    prereg = {f: FR0 + 4*i for i, f in enumerate(pre)}
    def uread_ops(f, r):
        off = 64*(8*f[1] + f[2])
        return [f"ds_read_b64 {vr(r,2)}, v{vUA} offset:{off}", f"ds_read_b64 {vr(r+2,2)}, v{vUA} offset:{off+8}"]
    def uread(f, r):
        for x in uread_ops(f, r): A(x)
    NP = {0: cfg.npo, 1: cfg.npy}
    NO0 = cfg.no0

    A(f"s_cmp_lg_u32 s{sHF}, 0")
    A("s_cbranch_scc1 L_hf1_x")
    A("s_waitcnt vmcnt(2)")
    so = stage_ops(0, 46)
    head = 0
    while not so[head].startswith("ds_"): A(so[head]); head += 1
    so = so[head:]; nd = 0
    for ks in range(8):
        A(f"s_waitcnt lgkmcnt({min(15, 7 - ks + nd)})")
        A(kmf(1, ks))
        for x in so[:3]: A(x); nd += x.startswith("ds_")
        so = so[3:]
    for x in so: A(x)
    if cfg.dynprio: A("s_setprio 0")
    A("s_waitcnt lgkmcnt(0)")
    stamp(6)
    A("s_barrier")
    A("s_mov_b32 vcc_lo, 0xaaaaaaaa"); A("s_mov_b32 vcc_hi, 0xaaaaaaaa")
    for i in range(8):
        A(f"v_mul_f32 v{vAcc+i}, v{vAcc+i}, v{vF}")
    for i in range(8):
        A(f"ds_write_addtid_b32 v{vAcc+i} offset:{i*ROW}")
    A("s_waitcnt vmcnt(0)")
    for x in stage_ops(1, 50)[:-1]: A(x)
    A(f"s_xor_b32 s3, s{sM0W}, 1024")
    A("s_mov_b32 m0, s3")
    for f in pre[:NO0]: uread(f, prereg[f])
    A(f"s_waitcnt lgkmcnt({min(15, 2*NO0)})")
    stamp(4)
    A("s_setprio 2")
    A("s_barrier")
    for i in range(5):
        A(f"ds_read_addtid_b32 v{E+i} offset:{i*ROW}")
    A(f"s_mov_b32 m0, s{sM0W}")
    for f in pre[NO0:NO0+NP[0][0]]: uread(f, prereg[f])
    A(f"s_waitcnt lgkmcnt({2*NP[0][0]})")
    for i in range(5):
        A(f"v_fma_f32 v{vAcc+8+i}, v{vAcc+8+i}, v{vF}, v{E+i}")
    a = vAcc + 8; N = [E, E+1, E+2]; o = vAcc
    A(f"v_cvt_pk_bf16_f32 v{o+1}, v{a+1}, v{a+1}")
    A(f"v_mov_b32_dpp v{N[0]}, v{a+2} wave_rol:1 row_mask:0xf bank_mask:0xf")
    A(f"v_cvt_pk_bf16_f32 v{o+2}, v{a+1}, v{a}")
    A(f"v_cvt_pk_bf16_f32 v{o+3}, v{a}, v{a}")
    A(f"v_mov_b32_dpp v{N[0]}, v{a} wave_shl:1 row_mask:0xf bank_mask:0xf")
    A(f"v_mov_b32_dpp v{N[1]}, v{a+3} wave_rol:1 row_mask:0xf bank_mask:0xf")
    A(f"v_cvt_pk_bf16_f32 v{o}, v{N[0]}, v{N[0]}")
    A(f"v_mov_b32_dpp v{N[2]}, v{a+4} wave_rol:1 row_mask:0xf bank_mask:0xf")
    A(f"ds_write_b128 v251, {vr(o,4)} offset:{16*128}")
    A(f"v_mov_b32_dpp v{N[1]}, v{a+2} wave_shl:1 row_mask:0xf bank_mask:0xf")
    A(f"v_mov_b32_dpp v{N[2]}, v{a+3} wave_shl:1 row_mask:0xf bank_mask:0xf")
    for (src, n, dst, off) in ((a+2, N[1], o+4, 16*64), (a+3, N[2], E+4, 0)):
        A(f"v_cndmask_b32 v{E+3}, v{src}, v{n}, vcc")
        A(f"v_cvt_pk_bf16_f32 v{dst+2}, v{src}, v{src}")
        A(f"v_cvt_pk_bf16_f32 v{dst+3}, v{src}, v{src}")
        A(f"v_cvt_pk_bf16_f32 v{dst}, v{n}, v{n}")
        A(f"v_cvt_pk_bf16_f32 v{dst+1}, v{n}, v{E+3}")
        A(f"ds_write_b128 v251, {vr(dst,4)} offset:{off}")
    for f in pre[NO0+NP[0][0]:NO0+sum(NP[0])]: uread(f, prereg[f])
    A(f"s_lshr_b32 s3, s{sW}, 1"); A(f"s_lshl_b32 s35, s{sRole}, 2"); A("s_add_u32 s3, s3, s35")
    for k in (0, 1, 4):
        A(f"s_cmp_eq_u32 s3, {k}"); A(f"s_cbranch_scc1 L_cv{k}")
    A("s_branch L_cv5")
    label("L_hf1_x")
    Lb = newlab("s0")
    A("s_waitcnt vmcnt(2)")
    A(f"s_cmp_eq_u32 s{sRole}, 0"); A(f"s_cbranch_scc1 {Lb}"); A("s_waitcnt vmcnt(0)"); label(Lb)
    for x in stage_ops(0, 46): A(x)
    A("s_waitcnt lgkmcnt(0)")
    stamp(6)
    A("s_barrier")
    NY0 = min(16, (7*cfg.ytail)//2)
    uq = [x for f in pre[:NY0] for x in uread_ops(f, prereg[f])]
    for ks in range(0, 8):
        A(kmf(1, ks))
        for x in uq[:cfg.ytail]: A(x)
        uq = uq[cfg.ytail:]
    for x in uq: A(x)
    A(f"s_xor_b32 s3, s{sM0W}, 1024")
    for i in range(5):
        A(f"v_mul_f32 v{vAcc+8+i}, v{vAcc+8+i}, v{vF}")
        A(f"ds_write_addtid_b32 v{vAcc+8+i} offset:{i*ROW}")
    A("s_mov_b32 m0, s3")
    A("s_waitcnt lgkmcnt(0)")
    stamp(4)
    A("s_barrier")
    for i in range(8):
        A(f"ds_read_addtid_b32 v{E+i} offset:{i*ROW}")
    A(f"s_mov_b32 m0, s{sM0W}")
    for f in pre[NY0:NY0+NP[1][0]]: uread(f, prereg[f])
    A(f"s_waitcnt lgkmcnt({2*NP[1][0]+4})")
    a = vAcc
    for i in range(4):
        A(f"v_fma_f32 v{vAcc+i}, v{vAcc+i}, v{vF}, v{E+i}")
    A(f"v_cvt_pk_bf16_f32 v{E}, v{a+3}, v{a+2}")
    A(f"v_cvt_pk_bf16_f32 v{E+1}, v{a+1}, v{a}")
    A(f"s_waitcnt lgkmcnt({2*NP[1][0]})")
    A(f"ds_write_b64 v250, {vr(E,2)}")
    for i in range(4, 8):
        A(f"v_fma_f32 v{vAcc+i}, v{vAcc+i}, v{vF}, v{E+i}")
    A(f"v_mov_b32_dpp v{E+2}, v{a+4} wave_rol:1 row_mask:0xf bank_mask:0xf")
    A(f"v_cvt_pk_bf16_f32 v{E+5}, v{a+6}, v{a+6}")
    A(f"v_cvt_pk_bf16_f32 v{E+6}, v{a+6}, v{a+5}")
    A(f"v_cvt_pk_bf16_f32 v{E+7}, v{a+4}, v{a+4}")
    A(f"v_cvt_pk_bf16_f32 v{E+4}, v{E+2}, v{a+7}")
    A("s_mov_b32 exec_lo, 0")
    A(f"ds_write_b128 v251, {vr(E+4,4)} offset:{16*192}")
    A("s_mov_b32 exec_lo, -1")
    for f in pre[NY0+NP[1][0]:NY0+sum(NP[1])]: uread(f, prereg[f])
    A(f"s_lshr_b32 s3, s{sW}, 1"); A(f"s_lshl_b32 s35, s{sRole}, 2"); A("s_add_u32 s3, s3, s35")
    for k in (2, 3, 6):
        A(f"s_cmp_eq_u32 s3, {k}"); A(f"s_cbranch_scc1 L_cv{k}")
    A("s_branch L_cv7")

    ACC = [36, 40, 44]; ET = 48
    def owner(t): return ((t & 3) ^ 2) if t < 4 else (t & 3)
    def ep_ops(t, ts):
        sig = t >> 2
        base = ((ts & 3) + 16*(ts >> 2))*ROW
        rd = [f"ds_read_b64 {vr(ET+2*wp,2)}, v{vEA} offset:{base+256*wp}" for wp in (0,4,1,5,2,6,3,7)]
        o = []
        for c in range(4):
            for row in range(2):
                o.append((f"v_add_f32 v{ET+2*c+row}, v{ET+2*c+row}, v{ET+8+2*c+row}", 2*c+2))
        for row in range(2):
            for dw in range(2):
                p = ET + 8 + 4*row + 2*dw
                o += [(x, 8) for x in (f"v_cvt_pk_bf16_f32 v{p+1}, v{ET+4*dw+row}, v{ET+4*dw+2+row}",
                      f"v_lshlrev_b32 v{p}, 16, v{p+1}", f"v_and_b32 v{p+1}, 0xffff0000, v{p+1}")]
                o += [(f"v_add_f32 v{p+r}, v{p+r}, v{vSk[sig]+4*row+2*dw+r}", 8) for r in range(2)]
            for dw in range(2):
                p = ET + 8 + 4*row + 2*dw
                o.append((f"v_cvt_pk_bf16_f32 v{ET+8+4*row+dw}, v{p}, v{p+1}", 8))
            o.append((f"buffer_store_dwordx2 {vr(ET+8+4*row,2)}, v{vG1 if sig else vG0}, s[8:11], 0 offen offset:{896*row}", 8))
        return rd, o

    def plan(role):
        if role == 0:
            tl = [(2, [(0,0),(1,0),(2,0)]),
                  (6, [(0,0),(1,0),(4,0),(5,0),(2,0),(3,0),(6,0)]),
                  (7, [(4,0),(3,0),(5,0),(6,0),(2,1),(1,1),(0,0),(7,0)])]
            groups = [[2], [6], [7]]
        else:
            tl = [(0, [(0,0)]), (1, [(1,0),(0,0)]), (3, [(2,0),(3,0),(1,0),(0,0)]),
                  (4, [(1,0),(2,0),(3,0),(4,0),(0,0)]), (5, [(1,0),(2,0),(3,0),(4,0),(5,0),(0,0)])]
            groups = [[0, 1], [3], [4], [5]]
        return tl, groups

    def conv(role, pair):
        hf = pair >> 1; young = hf == 1
        tl, groups = plan(role)
        M = []; ends = {}
        for n, (t, order) in enumerate(tl):
            for i, (a, ke) in enumerate(order):
                for rho in range(4):
                    M.append((t, a, rho, ke, n % 3, i == 0 and rho == 0))
            ends[t] = (len(M), n)
        nM = len(M)
        syncs = []
        for gi, g in enumerate(groups):
            end = ends[g[-1]][0]; fl = [(t, ends[t][1]) for t in g]
            if gi == len(groups) - 1: syncs.append((nM, fl, nM))
            else:
                sp = (cfg.syncB if role else cfg.syncA)[gi]
                assert sp >= end + cfg.fdelay + 4*len(g)
                syncs.append((sp, fl, end + cfg.fdelay))
        need = [[('U', a, rho, 0), ('K', t-a, rho, ke)] for (t, a, rho, ke, ai, first) in M]
        last = {}; firstuse = {}
        for i, n in enumerate(need):
            for f in n: last[f] = i; firstuse.setdefault(f, i)
        n0 = NY0 if young else NO0
        reg = {}; done_at = {}; st = dict(dsn=0, waited=2*(n0 + NP[hf][0]), g3=(role == 1))
        for f in pre[:n0 + sum(NP[hf])]:
            reg[f] = prereg[f]; st['dsn'] += 2; done_at[f] = st['dsn']
        free = [r for r in range(FR0, 256, 4) if r not in reg.values()]
        pending = sorted([f for f in firstuse if f not in reg], key=lambda f: firstuse[f])
        half = []
        def blocked(f): return f[0] == 'U' and f[1] >= 6 and not st['g3']
        def dsop(x): A(x); st['dsn'] += 1
        def finish_half():
            while half:
                x, f = half.pop(0); dsop(x); done_at[f] = st['dsn']
        def load(f, split=False):
            r = free.pop(0); reg[f] = r; pending.remove(f)
            if f[0] == 'U':
                x = uread_ops(f, r); dsop(x[0])
                half.append((x[1], f))
                if not split: finish_half()
            else:
                dsop(f"ds_read_b128 {vr(r,4)}, v{vKA} offset:{64*(56 - 8*f[1] + f[2])}"); done_at[f] = st['dsn']
        def pick(horizon):
            reserve = 0
            for f in pending:
                if firstuse[f] > horizon: return None
                if blocked(f): reserve += 1; continue
                return f if len(free) > reserve else None
            return None
        def burst(horizon, budget=99):
            finish_half(); n0 = st['dsn']
            while st['dsn'] - n0 < budget:
                f = pick(horizon)
                if f is None: break
                load(f)
        def wait_for(seq):
            if seq > st['waited']:
                n = min(st['dsn'] - seq, 15); A(f"s_waitcnt lgkmcnt({n})"); st['waited'] = st['dsn'] - n
        F = []
        def fill(n, i, force=False):
            while F and (n > 0 or force):
                txt, seq, nb = F[0]
                if nb > i and not force: break
                if seq: wait_for(seq)
                A(txt); F.pop(0); n -= 1
        def flush_ops(fl):
            return [f"ds_write_addtid_b32 v{ACC[ts % 3]+r} offset:{(4*r + (ts & 3) + 16*(ts >> 2))*ROW}" for (t, ts) in fl for r in range(4)]
        mine = [t for (t, _) in tl if owner(t) == pair]
        A(f"s_waitcnt lgkmcnt({2*NP[hf][1]})")
        stamp(5)
        A("s_barrier")
        for sig in sorted({t >> 2 for t in mine}):
            if not (role == 0 and sig == 1):
                F += [(x, 0, 0) for x in skip_ops(sig)]
        cst = 9; pos = 0
        for si, (sp, fl, fp) in enumerate(syncs):
            final = si == len(syncs) - 1
            if young:
                burst(sp + 4, cfg.yburst[si])
                fill(cfg.ybv[si], nM)
                if role == 0 and si == cfg.g3int:
                    fill(0, pos, True)
                    A("s_waitcnt vmcnt(0)")
                    for x in stage_ops(1, ET):
                        A(x); st['dsn'] += x.startswith("ds_")
                    F += [(x, 0, 0) for x in skip_ops(1)]
                    g3seq = st['dsn']
            elif si == 0:
                burst(nM, cfg.old0)
            fq = []; flseq = 0
            for i in range(pos, sp):
                for f in need[i]:
                    if f not in reg:
                        assert free and not blocked(f), (role, pair, i, f); load(f)
                if any(h[1] in need[i] for h in half): finish_half()
                t, a, rho, ke, ai, first = M[i]
                wait_for(max(done_at[f] for f in need[i]))
                u, k = reg[need[i][0]], reg[need[i][1]]
                A(f"v_mfma_f32_16x16x32_bf16 {vr(ACC[ai],4)}, {vr(k,4)}, {vr(u,4)}, {'0' if first else vr(ACC[ai],4)}")
                for f in need[i]:
                    if last[f] == i: free.append(reg[f])
                if young and i + 1 == fp and not final: fq = flush_ops(fl)
                if fq:
                    dsop(fq.pop(0)); flseq = st['dsn']
                elif half: finish_half()
                else:
                    f = pick(i + cfg.la)
                    if f is not None: load(f, True)
                    else: fill(2, i)
            pos = sp
            if not young and cfg.dynprio: A("s_setprio 0")
            finish_half()
            if not young or final:
                for x in flush_ops(fl): dsop(x)
                flseq = st['dsn']
            assert not fq
            if young and role == 0 and si == cfg.g3int: flseq = max(flseq, g3seq)
            if not young and not final: burst(syncs[si+1][0] + 4)
            if not young or any(owner(t) == pair for (t, ts) in fl): fill(0, pos, True)
            wait_for(flseq)
            stamp(cst, cfg.profc); cst += 1
            if not young and cfg.dynprio: A("s_setprio 2")
            A("s_barrier")
            if role == 0 and si == cfg.g3int: st['g3'] = True
            for (t, ts) in fl:
                if owner(t) == pair:
                    rd, o = ep_ops(t, ts); b0 = st['dsn']
                    for x in rd: dsop(x)
                    F += [(x, b0 + k, pos + 6) for (x, k) in o]
        fill(0, nM, True)

    for k in range(8):
        label(f"L_cv{k}")
        C(f"================ role {'AB'[k>>2]} pair {k&3}")
        conv(k >> 2, k & 3)
        if cfg.prof: A("s_branch L_fin")
        else: A("s_endpgm")
    label("L_fin")
    if cfg.prof:
        stamp(7)
        A("s_waitcnt vmcnt(0)")
        stamp(8)
        A("s_waitcnt lgkmcnt(0)")
        NS = 16
        A(f"v_cmp_eq_u32 vcc, 0, v{vLane}")
        A("s_and_saveexec_b64 s[58:59], vcc")
        A(f"s_lshl_b32 s3, s2, 3"); A(f"s_add_u32 s3, s3, s{sW}"); A(f"s_mul_i32 s3, s3, {8*NS}")
        A("v_mov_b32 v100, s3")
        for k in range(NS):
            A(f"v_mov_b32 v102, s{64+2*k}"); A(f"v_mov_b32 v103, s{65+2*k}")
            A(f"global_store_dwordx2 v100, v[102:103], s[62:63] offset:{8*k}"); A("s_nop 1")
    label("L_end")
    A("s_endpgm")
    L2, nins = hz.pad(L)
    head = f"""; S4D SSM convolution (generated by gen/gen4.py)
; @launch grid=(224,1,1) block=(512,1,1) lds={LDS_BYTES}
.amdgcn_target "amdgcn-amd-amdhsa--gfx950"
.text
.globl standalone__ssm_conv_s4d__prompt_kernel
.p2align 8
.type standalone__ssm_conv_s4d__prompt_kernel,@function
standalone__ssm_conv_s4d__prompt_kernel:
"""
    tail_ = """.section .rodata,"a"
.p2align 6
.amdhsa_kernel standalone__ssm_conv_s4d__prompt_kernel
  .amdhsa_next_free_vgpr 256
  .amdhsa_next_free_sgpr 102
  .amdhsa_accum_offset 256
  .amdhsa_group_segment_fixed_size 0
  .amdhsa_kernarg_size 80
  .amdhsa_user_sgpr_count 2
  .amdhsa_user_sgpr_kernarg_segment_ptr 1
  .amdhsa_system_sgpr_workgroup_id_x 1
.end_amdhsa_kernel
"""
    return head + "\n".join(L2) + "\n" + tail_

if __name__ == "__main__":
    cfg = Cfg()
    out = sys.argv[1]
    for a in sys.argv[2:]:
        k, v = a.split("=", 1); assert hasattr(cfg, k), k; setattr(cfg, k, eval(v))
    open(out, "w").write(gen(cfg))
```
